```python
import torch

def _softmax(x, axis=-1):
    return torch.softmax(x, dim=axis)
def _gelu(x):
    return torch.nn.functional.gelu(x, approximate="tanh")
def _silu(x):
    return torch.nn.functional.silu(x)
def _sigmoid(x):
    return torch.sigmoid(x)
def _layernorm(x, axis=-1, eps=1e-5):
    m = x.mean(dim=axis, keepdim=True)
    v = x.var(dim=axis, keepdim=True, unbiased=False)
    return (x - m) / torch.sqrt(v + eps)
def _scatter_add(tgt, idx, src, axis=0):
    return tgt.clone().index_add_(axis, idx, src)
def _segment_sum(src, seg, n):
    out = torch.zeros((n,) + src.shape[1:], dtype=src.dtype)
    return out.index_add_(0, seg, src)
def _pad(x, pw):
    flat = tuple(v for pair in reversed(pw) for v in pair)
    return torch.nn.functional.pad(x, flat)

kernel_name = 'gated_mix__sliding_block__dense_activation_silu__prompt'

def setup_inputs():

    _w = (lambda a: (lambda t: t.to(torch.bfloat16) if t.is_floating_point() else t)(torch.as_tensor(a)))
    def _A_setup():
        B, S, D = 1, 2048, 576
        return {
            "x": _w((lambda *s: torch.randn(*s, dtype=torch.bfloat16) * 0.2)(B, S, D)),
            "wqkv": _w((lambda *s: torch.randn(*s, dtype=torch.bfloat16) * 0.2)(D, 3 * D)),
            "wo": _w((lambda *s: torch.randn(*s, dtype=torch.bfloat16) * 0.2)(D, D)),
        }
    _A_in = _A_setup()

    def _B_setup():
        B, S, D, F = 1, 2048, 576, 4608
        return {
            "x": _w((lambda *s: torch.randn(*s, dtype=torch.bfloat16) * 0.2)(B, S, D)),
            "w1": _w((lambda *s: torch.randn(*s, dtype=torch.bfloat16) * 3.2)(D, F) * (D ** -0.5)),
            "w2": _w((lambda *s: torch.randn(*s, dtype=torch.bfloat16) * 3.2)(F, D) * (F ** -0.5)),
        }
    _B_in = _B_setup()

    return {
        "A_x": _A_in["x"],
        "A_wqkv": _A_in["wqkv"],
        "A_wo": _A_in["wo"],
        "B_x": _B_in["x"],
        "B_w1": _B_in["w1"],
        "B_w2": _B_in["w2"],
        "gate_w": _w((lambda *s: torch.randn(*s, dtype=torch.bfloat16) * 0.2)(576) * 16.0),
    }

def reference(A_x, A_wqkv, A_wo, B_x, B_w1, B_w2, gate_w):
    def _A_ref(x, wqkv, wo):
        B, S, D = x.shape
        H = 32; Dh = D // H; W = 256
        qkv = (lambda x, *d: x.permute(*d))((x @ wqkv).reshape(B, S, 3, H, Dh), 2, 0, 3, 1, 4)
        q, k, v = qkv[0], qkv[1], qkv[2]
        scores = torch.einsum("bhqd,bhkd->bhqk", q, k) * (Dh ** -0.5)
        idx = torch.arange(S)
        mask = (idx[:, None] - idx[None, :] >= 0) & (idx[:, None] - idx[None, :] < W)
        scores = torch.where(mask[None, None], scores, -1e9)
        p = _softmax(scores, axis=-1)
        o = torch.einsum("bhqk,bhkd->bhqd", p, v)
        return (lambda x, *d: x.permute(*d))(o, 0, 2, 1, 3).reshape(B, S, D) @ wo

    def _B_ref(x, w1, w2):
        h = torch.einsum("bsd,df->bsf", x, w1)
        h = _silu(h)
        out = torch.einsum("bsf,fd->bsd", h, w2)
        return out

    x = A_x
    g = _sigmoid((x * gate_w).sum(-1, keepdims=True))
    a = _A_ref(x, A_wqkv, A_wo)
    b = _B_ref(x, B_w1, B_w2)
    return g * a + (1 - g) * b
```

```python
import heapq

def V(n, cnt=1):
    return [('v', n + k) for k in range(cnt)]
def A(n, cnt=1):
    return [('a', n + k) for k in range(cnt)]
def S(n, cnt=1):
    return [('s', n + k) for k in range(cnt)]

class Reg:
    __slots__ = ('k', 'b', 'n')
    def __init__(self, k, b, n=1):
        self.k, self.b, self.n = k, b, n
    def __str__(self):
        if self.n == 1:
            return f"{self.k}{self.b}"
        return f"{self.k}[{self.b}:{self.b + self.n - 1}]"
    def regs(self):
        return [(self.k, self.b + i) for i in range(self.n)]
    def sub(self, off, n=1):
        assert off + n <= self.n, (str(self), off, n)
        return Reg(self.k, self.b + off, n)
    def __getitem__(self, i):
        return self.sub(i, 1)

def v(b, n=1): return Reg('v', b, n)
def a(b, n=1): return Reg('a', b, n)
def s(b, n=1): return Reg('s', b, n)

class Special:
    def __init__(self, name): self.name = name
    def __str__(self): return self.name
    def regs(self): return [(self.name, 0)]
M0 = Special('m0'); VCC = Special('vcc'); SCC = Special('scc'); EXEC = Special('exec')

def regs_of(x):
    if isinstance(x, (Reg, Special)):
        return x.regs()
    return []

def opstr(x):
    if isinstance(x, float):
        return repr(x)
    if isinstance(x, int):
        if -16 <= x <= 64:
            return str(x)
        return hex(x & 0xffffffff)
    return str(x)

class Ins:
    __slots__ = ('text', 'kind', 'rd', 'wr', 'srcC', 'srcAB', 'tag', 'wait_tags', 'data', 'flags', 'passes',
                 'slot', 'tdone')
    def __init__(self, text, kind, rd=(), wr=(), **kw):
        self.text = text; self.kind = kind
        self.rd = list(rd); self.wr = list(wr)
        self.srcC = kw.get('srcC', []); self.srcAB = kw.get('srcAB', [])
        self.tag = kw.get('tag'); self.wait_tags = kw.get('wait_tags', [])
        self.data = kw.get('data', []); self.flags = kw.get('flags', set())
        self.passes = kw.get('passes', 8)
        self.slot = None; self.tdone = 0

class Node:
    __slots__ = ('ins', 'cls', 'idx', 'preds', 'succs', 'npred', 'ready', 'issue', 'cost', 'is_mfma', 'nvm')
    def __init__(self, ins, cls):
        self.ins = ins; self.cls = cls
        self.preds = {}; self.succs = []; self.ready = 0; self.issue = None

COST = {'mfma': 8, 'valu': 4, 'trans': 8, 'salu': 4, 'dsr': 4, 'dsw': 8, 'vld': 8, 'vst': 12, 'dma': 12, 'bar': 4,
        'misc': 4, 'smem': 4}
LAT_DS = 140
LAT_VM = 1200
TA_GAP = 80

class Tracker:
    def __init__(self):
        self.vm = []
        self.lg = []
        self.lastw = {}
        self.readC = {}
        self.readSt = {}
        self.slot = 0
    def clone(self):
        t = Tracker()
        t.vm = list(self.vm); t.lg = list(self.lg); t.lastw = dict(self.lastw); t.readC = dict(self.readC)
        t.readSt = dict(self.readSt); t.slot = self.slot
        return t

class Prog:
    def __init__(self):
        self.out = []
        self.nodes = []
        self.tr = Tracker()
        self.cur_cls = 2
        self.bundle = None
        self.stats = {'nops': 0, 'waits': 0, 'instr': 0, 'mfma': 0}
        self.model_time = 0
        self.log = []
        self.ta_gap = TA_GAP

    def add(self, ins, cls=None):
        if self.bundle is not None:
            self.bundle.append(ins)
            return ins
        n = Node([ins], self.cur_cls if cls is None else cls)
        self.nodes.append(n)
        return ins
    def begin_bundle(self):
        self.bundle = []
    def end_bundle(self, cls=None):
        b = self.bundle; self.bundle = None
        n = Node(b, self.cur_cls if cls is None else cls)
        self.nodes.append(n)

    def op(self, name, dst, *srcs, kind='valu', extra='', rd=(), wr=(), cls=None, flags=()):
        r = []
        for x in srcs:
            if isinstance(x, str) and x.startswith('-v'):
                r.append(('v', int(x[2:])))
            else:
                r += regs_of(x)
        w = regs_of(dst)
        txt = f"{name} {opstr(dst)}" + ''.join(', ' + opstr(x) for x in srcs) + (' ' + extra if extra else '')
        return self.add(Ins(txt, kind, list(r) + list(rd), list(w) + list(wr), flags=set(flags)), cls)
    def valu(self, name, dst, *srcs, **kw):
        return self.op(name, dst, *srcs, kind='valu', **kw)
    def trans(self, name, dst, *srcs, **kw):
        return self.op(name, dst, *srcs, kind='trans', **kw)
    def salu(self, name, dst, *srcs, scc=True, rdscc=False, **kw):
        wr = list(kw.pop('wr', ())) + ([('scc', 0)] if scc else [])
        rd = list(kw.pop('rd', ())) + ([('scc', 0)] if rdscc else [])
        return self.op(name, dst, *srcs, kind='salu', wr=wr, rd=rd, **kw)
    def smov(self, dst, src, **kw):
        name = 's_mov_b64' if (isinstance(dst, Reg) and dst.n == 2) or dst is EXEC else 's_mov_b32'
        return self.op(name, dst, src, kind='salu', **kw)
    def scmp(self, name, x, y, **kw):
        txt = f"{name} {opstr(x)}, {opstr(y)}"
        return self.add(Ins(txt, 'salu', regs_of(x) + regs_of(y), [('scc', 0)]), kw.get('cls'))
    def mfma(self, d, x, y, c, shape='32x32x16', rd=(), wr=()):
        txt = f"v_mfma_f32_{shape}_bf16 {d}, {x}, {y}, {opstr(c)}"
        sc = regs_of(c); ab = regs_of(x) + regs_of(y)
        return self.add(Ins(txt, 'mfma', sc + ab + list(rd), regs_of(d) + list(wr), srcC=sc, srcAB=ab,
                            passes=8 if shape == '32x32x16' else 4), 0)
    def ds_read_tr(self, d, addr, off, rd=(), cls=1):
        assert 0 <= off < 65536, off
        txt = f"ds_read_b64_tr_b16 {d}, {addr} offset:{off}"
        return self.add(Ins(txt, 'dsr', regs_of(addr) + list(rd), regs_of(d)), cls)
    def ds_read(self, d, addr, off, rd=(), cls=1, wait_tags=()):
        w = {1: 'b32', 2: 'b64', 4: 'b128'}[d.n]
        assert 0 <= off < 65536, off
        txt = f"ds_read_{w} {d}, {addr} offset:{off}"
        return self.add(Ins(txt, 'dsr', regs_of(addr) + list(rd), regs_of(d) + [('TAG', t) for t in wait_tags], wait_tags=list(wait_tags)), cls)
    def ds_write(self, addr, d, off, rd=(), wr=(), cls=None):
        w = {1: 'b32', 2: 'b64', 4: 'b128'}[d.n]
        txt = f"ds_write_{w} {addr}, {d} offset:{off}"
        return self.add(Ins(txt, 'dsw', regs_of(addr) + regs_of(d) + list(rd), list(wr)), cls)
    def bload(self, d, voff, srd, soff, off=0, aux='', rd=(), wr=(), cls=1, tag=None):
        w = {1: 'dword', 2: 'dwordx2', 3: 'dwordx3', 4: 'dwordx4'}[d.n]
        assert 0 <= off < 4096
        txt = f"buffer_load_{w} {d}, {voff}, {srd}, {opstr(soff)} offen" + (f" offset:{off}" if off else '') + (' ' + aux if aux else '')
        return self.add(Ins(txt, 'vld', regs_of(voff) + regs_of(srd) + regs_of(soff) + list(rd), regs_of(d) + list(wr), tag=tag), cls)
    def bstore(self, d, voff, srd, soff, off=0, aux='', rd=(), wr=(), cls=None, tag=None, wait_tags=()):
        w = {1: 'dword', 2: 'dwordx2', 3: 'dwordx3', 4: 'dwordx4'}[d.n]
        assert 0 <= off < 4096
        txt = f"buffer_store_{w} {d}, {voff}, {srd}, {opstr(soff)} offen" + (f" offset:{off}" if off else '') + (' ' + aux if aux else '')
        return self.add(Ins(txt, 'vst', regs_of(d) + regs_of(voff) + regs_of(srd) + regs_of(soff) + [('TAG', tag)] + list(rd), list(wr) + [('TAG', t) for t in wait_tags],
                            data=regs_of(d) if d.n >= 3 else [], tag=tag, wait_tags=list(wait_tags)), cls)
    def dma(self, voff, srd, soff, off=0, aux='', tag=None, rd=(), wr=(), cls=1):
        assert 0 <= off < 4096
        txt = f"buffer_load_dwordx4 {voff}, {srd}, {opstr(soff)} offen" + (f" offset:{off}" if off else '') + (' ' + aux if aux else '') + " lds"
        return self.add(Ins(txt, 'dma', regs_of(voff) + regs_of(srd) + regs_of(soff) + [('m0', 0), ('TAG', tag)] + list(rd), list(wr), tag=tag), cls)
    def barrier(self, wait_tags=(), rd=(), wr=(), cls=1):
        return self.add(Ins("s_barrier", 'bar', list(rd), list(wr) + [('BAR', 0)] + [('TAG', t) for t in wait_tags], wait_tags=list(wait_tags)), cls)
    def raw(self, text, kind='misc', rd=(), wr=(), cls=None, wait_tags=(), flags=()):
        return self.add(Ins(text, kind, list(rd), list(wr) + [('TAG', t) for t in wait_tags], wait_tags=list(wait_tags), flags=set(flags)), cls)

    @staticmethod
    def lat(p, c, reg):
        k = p.kind
        if k == 'mfma':
            if c.kind == 'mfma' and reg in c.srcC and reg not in c.srcAB:
                return 0
            if reg[0] in ('v', 'a'):
                return 20 + 8 * p.passes
            return 0
        if k == 'dsr' and reg[0] in ('v', 'a'): return LAT_DS
        if k == 'vld' and reg[0] in ('v', 'a'): return LAT_VM
        if k in ('valu', 'trans'):
            base = COST[k]
            if c.kind == 'mfma': return base + 8
            if k == 'trans': return base + 4
            if reg[0] == 's' or reg[0] == 'vcc': return base + (20 if c.kind in ('vld', 'vst', 'dma') else 8)
            if 'perm' in c.flags: return base + 8
            return base
        return COST.get(k, 4)

    def schedule(self, reorder=True):
        nodes = self.nodes; self.nodes = []
        if not nodes:
            return
        SC = ('scc', 0)
        fused = []
        owner = None
        for n in nodes:
            first_rd = None
            wrote = False
            for ins in n.ins:
                if SC in ins.rd and not wrote:
                    first_rd = ins
                if SC in ins.wr: wrote = True
            if first_rd is not None:
                assert owner is not None, first_rd.text
                k = fused.index(owner)
                for m in fused[k + 1:]:
                    owner.ins += m.ins
                del fused[k + 1:]
                owner.ins += n.ins
                owner.cls = min(owner.cls, n.cls)
            else:
                fused.append(n)
                if wrote: owner = n
        nodes = fused
        for n in nodes:
            for ins in n.ins:
                ins.rd = [r for r in ins.rd if r != SC]; ins.wr = [r for r in ins.wr if r != SC]
        lastw = {}; readers = {}
        for idx, n in enumerate(nodes):
            n.idx = idx
            n.nvm = sum(1 for i in n.ins if i.kind in ('vld', 'vst', 'dma'))
            n.is_mfma = any(i.kind == 'mfma' for i in n.ins)
            n.cost = sum(COST[i.kind] for i in n.ins)
            def dep(p, l):
                if p is n: return
                if p not in n.preds or n.preds[p] < l:
                    n.preds[p] = l
            for ins in n.ins:
                for r in ins.rd:
                    if r in lastw:
                        pn, pi = lastw[r]
                        dep(pn, self.lat(pi, ins, r))
                for r in ins.wr:
                    if r in lastw:
                        pn, pi = lastw[r]
                        l = 4
                        if pi.kind == 'mfma' and ins.kind != 'mfma' and r[0] in ('v', 'a'): l = 20 + 8 * pi.passes
                        if pi.kind in ('dsr', 'vld') and r[0] in ('v', 'a'): l = LAT_DS if pi.kind == 'dsr' else LAT_VM
                        dep(pn, l)
                    for (pn, pi) in readers.get(r, ()):
                        l = 4
                        if pi.kind == 'mfma' and r in pi.srcC and ins.kind in ('valu', 'trans'): l = 36
                        if pi.kind == 'vst' and r in pi.data: l = 12 + 8
                        dep(pn, l)
                for r in ins.rd:
                    readers.setdefault(r, []).append((n, ins))
                for r in ins.wr:
                    lastw[r] = (n, ins); readers[r] = []
        if not reorder:
            t = self.model_time
            for n in nodes:
                n.issue = t
                self.emit_node(n, t)
                t += n.cost
            self.model_time = t
            return
        for n in nodes:
            n.npred = len(n.preds)
            for p in n.preds:
                p.succs.append(n)
        t = self.model_time; pipe = t; ta = t
        avail = []
        for n in nodes:
            n.ready = t
            if n.npred == 0:
                avail.append(n)
        remaining = len(nodes)
        mf = sorted([n for n in avail if n.is_mfma], key=lambda n: n.idx)
        ot = sorted([n for n in avail if not n.is_mfma], key=lambda n: (n.cls, n.idx))
        import bisect
        def push(n):
            if n.is_mfma:
                keys = [m.idx for m in mf]
                mf.insert(bisect.bisect(keys, n.idx), n)
            else:
                keys = [(m.cls, m.idx) for m in ot]
                ot.insert(bisect.bisect(keys, (n.cls, n.idx)), n)
        while remaining:
            pick = None
            cm = None
            for m in mf[:6]:
                if m.ready <= max(t, pipe):
                    cm = m; break
            if cm is not None and pipe <= t and cm.ready <= t:
                pick = cm
            else:
                limit = None; fallback = None
                if cm is not None:
                    limit = max(pipe, cm.ready)
                for o in ot:
                    if o.ready <= t and (not o.nvm or ta <= t):
                        if self.haz_need(o.ins[0]) > 0:
                            if limit is not None: continue
                            if fallback is None: fallback = o
                            continue
                        if limit is None or t + o.cost <= limit + 3 or o.cost > 24:
                            pick = o; break
                        continue
                if pick is None and fallback is not None:
                    pick = fallback
                if pick is None:
                    cand = []
                    if cm is not None: cand.append(max(pipe, cm.ready))
                    else:
                        for m in mf[:6]: cand.append(max(pipe, m.ready))
                    for o in ot:
                        rr = max(o.ready, ta) if o.nvm else o.ready
                        if rr > t: cand.append(rr)
                    nt = min(c for c in cand if c > t) if any(c > t for c in cand) else t + 1
                    t = nt
                    continue
            n = pick
            if n.is_mfma: mf.remove(n)
            else: ot.remove(n)
            n.issue = t
            extra = self.emit_node(n, t)
            t += extra * 4
            n.issue = t
            if n.is_mfma:
                pipe = t + 4 * n.ins[0].passes
            if n.nvm: ta = t + n.cost + self.ta_gap * n.nvm
            t += n.cost
            remaining -= 1
            for sn in n.succs:
                l = sn.preds[n]
                rt = n.issue + l + (n.cost - COST[n.ins[-1].kind] if len(n.ins) > 1 else 0)
                if rt > sn.ready: sn.ready = rt
                sn.npred -= 1
                if sn.npred == 0:
                    push(sn)
        self.model_time = max(t, pipe)

    def line(self, text):
        self.out.append('    ' + text)
        self.tr.slot += 1
        self.stats['instr'] += 1

    def emit_node(self, n, t):
        extra = 0
        for ins in n.ins:
            extra += self.emit_ins(ins, t)
        return extra

    def haz_need(self, ins):
        tr = self.tr
        need = 0
        ck = ins.kind
        def req(p, ws):
            nonlocal need
            d = tr.slot - p.slot - 1
            if ws - d > need: need = ws - d
        for r in ins.rd:
            p = tr.lastw.get(r)
            if p is None: continue
            pk = p.kind
            if r[0] in ('v', 'a'):
                if pk in ('valu', 'trans'):
                    if ck == 'mfma': req(p, 2)
                    if 'perm' in ins.flags or 'dpp' in ins.flags: req(p, 2)
                    if 'rfl' in ins.flags: req(p, 1)
                    if pk == 'trans' and ck != 'trans': req(p, 1)
                elif pk == 'mfma':
                    big = {8: 12, 4: 8}[p.passes]
                    if ck == 'mfma':
                        if r in ins.srcAB: req(p, big)
                        elif r in ins.srcC:
                            if [x for x in p.wr if x[0] in ('v', 'a')] != ins.srcC or p.passes != ins.passes: req(p, big - 2)
                    else:
                        req(p, big)
            elif r[0] in ('s', 'vcc'):
                if pk in ('valu', 'trans'):
                    if ck in ('valu', 'trans'): req(p, 2)
                    elif ck in ('vld', 'vst', 'dma'): req(p, 5)
                    else: req(p, 2)
            elif r[0] == 'm0':
                if ck == 'dma': req(p, 1)
        for r in ins.wr:
            if r[0] not in ('v', 'a'): continue
            p = tr.lastw.get(r)
            if p is not None and p.kind == 'mfma' and ck != 'mfma':
                req(p, {8: 12, 4: 8}[p.passes])
            p = tr.readC.get(r)
            if p is not None and ck in ('valu', 'trans'):
                req(p, {8: 7, 4: 3}[p.passes])
            p = tr.readSt.get(r)
            if p is not None:
                req(p, 2)
        return need

    def emit_ins(self, ins, t):
        tr = self.tr
        extra = 0
        touched = set(ins.rd) | set(ins.wr)
        vmN = None; lgN = None
        for k, o in enumerate(tr.vm):
            need = False
            if o.kind == 'vld' and any(r in touched for r in o.wr if r[0] in ('v', 'a')): need = True
            if o.tag is not None and o.tag in ins.wait_tags: need = True
            if need: vmN = len(tr.vm) - 1 - k
        for k, o in enumerate(tr.lg):
            if o.kind == 'dsr' and any(r in touched for r in o.wr): lgN = len(tr.lg) - 1 - k
            if o.kind == 'dsw' and ins.kind == 'bar': lgN = len(tr.lg) - 1 - k
        if 'drain_vm' in ins.flags and tr.vm: vmN = 0
        if 'drain_lg' in ins.flags and tr.lg: lgN = 0
        if lgN is not None:
            k = len(tr.lg) - lgN
            while k < len(tr.lg) and tr.lg[k].tdone <= t:
                k += 1
            lgN = len(tr.lg) - k
        if vmN is not None or lgN is not None:
            parts = []
            if vmN is not None:
                vmN = min(vmN, 63)
                parts.append(f"vmcnt({vmN})"); tr.vm = tr.vm[len(tr.vm) - vmN:] if vmN else []
            if lgN is not None:
                lgN = min(lgN, 15)
                parts.append(f"lgkmcnt({lgN})"); tr.lg = tr.lg[len(tr.lg) - lgN:] if lgN else []
            self.line("s_waitcnt " + ' '.join(parts)); self.stats['waits'] += 1; extra += 1
        ck = ins.kind
        need = self.haz_need(ins)
        while need > 0:
            k = min(need, 16)
            self.out.append(f"    s_nop {k - 1}")
            tr.slot += k; self.stats['nops'] += k; need -= k; extra += k
        ins.slot = tr.slot
        self.line(ins.text)
        if ck == 'mfma': self.stats['mfma'] += 1
        for r in ins.wr:
            tr.lastw[r] = ins
            tr.readC.pop(r, None); tr.readSt.pop(r, None)
        if ck == 'mfma':
            for r in ins.srcC:
                if r not in ins.wr: tr.readC[r] = ins
        if ck == 'vst':
            for r in ins.data: tr.readSt[r] = ins
        if ck in ('vld', 'vst', 'dma'):
            tr.vm.append(ins)
            assert len(tr.vm) <= 63 or True
        if ck in ('dsr', 'dsw'):
            ins.tdone = t + LAT_DS
            tr.lg.append(ins)
        return extra

    def text(self, s_):
        self.schedule()
        for l in s_.strip('\n').split('\n'):
            self.out.append(l)
            ls = l.strip()
            if ls and not ls.endswith(':') and not ls.startswith(';') and not ls.startswith('.'):
                self.tr.slot += 1; self.stats['instr'] += 1
    def label(self, name):
        self.schedule()
        self.out.append(name + ':')
    def fence_hazards(self, n=16):
        self.schedule()
        self.out.append(f"    s_nop {n - 1}")
        self.tr.slot += n

def merge_trackers(trs):
    def key(o):
        if o.tag is not None: return ('t', o.tag)
        if o.kind == 'vld': return ('r', tuple(o.wr))
        return None
    younger = {}
    proto = {}
    for t in trs:
        assert not t.lg, "lgkm ops outstanding at join"
        n = len(t.vm)
        for k, o in enumerate(t.vm):
            kk = key(o)
            if kk is None: continue
            y = n - 1 - k
            if kk not in younger or y < younger[kk]:
                younger[kk] = y
            proto[kk] = o
    m = Tracker()
    if younger:
        L = max(younger.values()) + 1
        lst = [[] for _ in range(L)]
        for kk, y in younger.items():
            lst[L - 1 - y].append(proto[kk])
        vm = []
        for group in lst:
            if len(group) == 0:
                vm.append(Ins('', 'vst'))
            elif len(group) == 1:
                vm.append(group[0])
            else:
                c = MultiOp(group)
                vm.append(c)
        m.vm = vm
    m.slot = max(t.slot for t in trs) + 1000
    return m

class _TagSet:
    def __init__(self, tags): self.tags = tags
    def __eq__(self, other): return other in self.tags
    def __hash__(self): return 0

class MultiOp(Ins):
    def __init__(self, group):
        wr = []
        for g in group:
            if g.kind == 'vld': wr += g.wr
        Ins.__init__(self, '', 'vld' if wr else 'vst', [], wr)
        tags = [g.tag for g in group if g.tag is not None]
        self.tag = _TagSet(tags) if tags else None
```

```python
import sys, math, struct, argparse
from asmgen import *

ap = argparse.ArgumentParser()
ap.add_argument('--mi', type=int, default=2)
ap.add_argument('--out', default='gated_mix__sliding_block__dense_activation_silu__prompt.s')
ap.add_argument('--waux', default='')
ap.add_argument('--paux', default='')
ap.add_argument('--rot', type=int, default=1)
ap.add_argument('--stamp', type=int, default=0)
ap.add_argument('--tagap', type=int, default=64)
args = ap.parse_args()

def f32(x): return struct.unpack('<I', struct.pack('<f', x))[0]

QK_BASE = 0
V_BASE = 0x500000
V_PITCH = 584 * 16
G_BASE = 0x800000
WS_SMALL = 0x900000
STAMP_BASE = {'qkv_kernel': 0x840000, 'main_kernel': 0x880000}
P_BASE = 0x1000000
P_WG = 18 * 4 * 2048
SLOT = 24576
NSLOT = 6
LOG2E = 1.4426950408889634
QSCALE = (18 ** -0.5) * LOG2E
BIG = -1.0e30

sX, sWq, sW1, sW2, sWo, sWS, sP, sGW = [s(8 + 4 * k, 4) for k in range(8)]
sI, sJ, sW = s(44), s(45), s(46)
sL6k, sL5k, sL4k, sL1k, sL128 = s(47), s(48), s(49), s(50), s(51)
sXoff = s(52)
sUA, sUB = s(53), s(54)
sU1 = [s(55 + q) for q in range(4)]
sUhA, sUhB = s(59), s(60)
sStA = [s(61 + k) for k in range(4)]
sStB = [s(65 + k) for k in range(4)]
sScA, sScB = s(69), s(70)
sT = [s(71 + k) for k in range(7)]
sSo = [s(78), s(79)]
sDp = s(80)
sNL2E = s(81)
sDq = s(82)
sPs = s(83)
sKo = [s(84), s(85), s(86)]
sVo = s(87)
sM2 = s(88, 2)
sLo = s(90, 2); sHi = s(92, 2)
sQB = s(94)
sTm = s(96, 2); sTm2 = s(98, 2)

vT = [v(1 + k) for k in range(7)]
vXoff = v(8)
vDq = [v(9 + k) for k in range(3)]
vD1 = [v(12 + k) for k in range(3)]
vDh = [v(15 + k) for k in range(4)]
vD2 = [v(19 + k) for k in range(9)]
vDo = [v(28), v(29)]
vTr = [v(30 + k) for k in range(12)]
vStA, vStB = v(42), v(43)
vIC, vG = v(44), v(45)
vK = [v(9 + k) for k in range(9)]
vKC = [v(46 + k) for k in range(9)]
vVa = [v(55), v(56)]
vPst = v(57)
vMx = [v(58), v(59)]
vLane = v(60)
vQrel = v(61)
vBIG = v(62)
ACC = [v(64 + 16 * k, 16) for k in range(4)]
HB = 128
def Hk(k): return v(HB + 4 * k, 4)
OF = [v(200, 4), v(204, 4), v(208, 4)]
TMP = v(212, 12)
CO = v(224, 16)
PP = [v(240, 8), v(248, 8)]
def Xf(ks): return a(4 * ks, 4)
NWF = 8
def Wf(k): return a(144 + 4 * (k % NWF), 4)
QF = [a(176 + 4 * k, 4) for k in range(4)]
def Kf(b, which): return a(12 * b + 4 * which, 4)
OACC = a(108, 16)
def Vf(b, u):
    k = 2 * b + u
    return a(124 + 4 * k, 4) if k < 5 else a(192 + 4 * (k - 5), 4)
KCF = [a(244, 4), a(248, 4)]

TOK_WS = ('WS', 0)
def RDY(n): return ('RDY', n)
def PIN(n): return ('PIN', n)
def FREE(n): return ('FREE', n)

class K:
    def __init__(self, name):
        self.p = Prog(); self.name = name; self.p.ta_gap = args.tagap
        self.wf = 0
        self.so = 0
        self.stamps = []

    def prologue(self, nwg=256):
        p = self.p
        mi = args.mi; jx = 32 // mi; ngj = 16 // jx
        lg = lambda x: x.bit_length() - 1
        p.text(f"""
.globl {self.name}
.p2align 8
.type {self.name},@function
{self.name}:
    s_cmp_ge_u32 s2, {nwg}
    s_cbranch_scc1 L_{self.name}_end
    s_load_dwordx4 s[72:75], s[0:1], 0
    s_load_dwordx2 s[76:77], s[0:1], 16
    s_load_dwordx4 s[84:87], s[0:1], 32
    s_load_dwordx4 s[88:91], s[0:1], 48
    s_load_dwordx4 s[92:95], s[0:1], 64
    v_lshrrev_b32 v1, 6, v0
    v_and_b32 v60, 63, v0
    s_and_b32 s3, s2, 7
    s_lshr_b32 s4, s2, 3
    v_readfirstlane_b32 s46, v1
    s_and_b32 s5, s3, {ngj - 1}
    s_lshr_b32 s6, s3, {lg(ngj)}
    s_lshl_b32 s44, s6, {lg(mi)}
    s_and_b32 s7, s4, {mi - 1}
    s_add_u32 s44, s44, s7
    s_lshl_b32 s45, s5, {lg(jx)}
    s_lshr_b32 s7, s4, {lg(mi)}
    s_add_u32 s45, s45, s7
    s_mul_i32 s47, s46, 6144
    s_mul_i32 s48, s46, 5120
    s_lshl_b32 s49, s46, 12
    s_lshl_b32 s50, s46, 10
    s_lshl_b32 s51, s46, 7
    s_mul_i32 s52, s44, 147456
    s_mov_b32 s11, 0x00020000
    s_mov_b32 s15, 0x00020000
    s_mov_b32 s19, 0x00020000
    s_mov_b32 s23, 0x00020000
    s_mov_b32 s27, 0x00020000
    s_mov_b32 s31, 0x00020000
    s_mov_b32 s35, 0x00020000
    s_mov_b32 s39, 0x00020000
    s_mov_b32 s10, {2048 * 1152}
    s_mov_b32 s14, {576 * 3456}
    s_mov_b32 s18, {576 * 9216}
    s_mov_b32 s22, {4608 * 1152}
    s_mov_b32 s26, {576 * 1152}
    s_mov_b32 s30, {WS_SMALL}
    s_mov_b32 s34, {P_WG}
    s_mov_b32 s38, 1152
    s_lshl_b32 s3, s44, 4
    s_add_u32 s3, s3, s45
    s_mul_i32 s3, s3, {P_WG}
    s_add_u32 s3, s3, {P_BASE}
    s_mov_b32 s81, {hex(f32(-LOG2E))}
    s_waitcnt lgkmcnt(0)
    s_mov_b32 s8, s72
    s_mov_b32 s9, s73
    s_mov_b32 s12, s74
    s_mov_b32 s13, s75
    s_mov_b32 s24, s76
    s_mov_b32 s25, s77
    s_mov_b32 s16, s84
    s_mov_b32 s17, s85
    s_mov_b32 s20, s86
    s_mov_b32 s21, s87
    s_mov_b32 s36, s88
    s_mov_b32 s37, s89
    s_mov_b32 s28, s94
    s_mov_b32 s29, s95
    s_add_u32 s32, s94, s3
    s_addc_u32 s33, s95, 0
    s_mov_b32 s40, s92
    s_mov_b32 s41, s93
    s_mov_b32 s42, 256
    s_mov_b32 s43, 0x00020000
""")
        if args.stamp:
            p.text("""
    s_memrealtime s[98:99]
    s_waitcnt lgkmcnt(0)
    v_writelane_b32 v0, s98, 0
    v_writelane_b32 v0, s99, 1
""")
            self.stamp('start')

    def addr_x(self):
        p = self.p
        p.valu('v_and_b32', vT[0], 31, vLane)
        p.valu('v_lshl_add_u32', vT[0], sW, 5, vT[0])
        p.valu('v_mul_u32_u24', vT[0], 1152, vT[0])
        p.valu('v_lshrrev_b32', vT[1], 5, vLane)
        p.valu('v_lshl_add_u32', vXoff, vT[1], 4, vT[0])

    def addr_dma_full(self, regs, pitch):
        p = self.p
        p.valu('v_lshrrev_b32', vT[2], 3, vLane)
        p.valu('v_mul_u32_u24', vT[2], pitch, vT[2])
        p.valu('v_lshrrev_b32', vT[3], 2, vLane)
        p.valu('v_and_b32', vT[3], 4, vT[3])
        p.valu('v_and_b32', vT[4], 7, vLane)
        p.valu('v_xor_b32', vT[3], vT[3], vT[4])
        p.valu('v_lshl_add_u32', regs[0], vT[3], 4, vT[2])
        for t in range(1, len(regs)):
            p.valu('v_add_u32', regs[t], 8 * t * pitch - 1024 * t, regs[0])

    def addr_tr(self, types):
        p = self.p
        p.valu('v_bfe_u32', vT[0], vLane, 2, 2)
        p.valu('v_and_b32', vT[1], 3, vLane)
        p.valu('v_bfe_u32', vT[2], vLane, 4, 1)
        p.valu('v_lshrrev_b32', vT[3], 5, vLane)
        p.valu('v_lshlrev_b32', vT[4], 3, vT[1])
        p.valu('v_lshl_add_u32', vT[4], vT[2], 5, vT[4])
        p.valu('v_bfe_u32', vT[5], vLane, 3, 1)
        p.valu('v_lshlrev_b32', vT[5], 6, vT[5])
        for (k, kind, c) in types:
            d = vTr[3 * k]
            if kind == 'half':
                p.valu('v_lshl_add_u32', vT[6], vT[3], 3, vT[0])
                p.valu('v_lshl_add_u32', d, vT[6], 6, vT[4])
            else:
                if kind == 'g1': p.valu('v_lshl_add_u32', vT[6], vT[3], 3, vT[0])
                elif kind == 'g2': p.valu('v_lshl_add_u32', vT[6], vT[3], 2, vT[0])
                else: p.valu('v_mov_b32', vT[6], vT[0])
                p.valu('v_lshl_add_u32', vT[6], vT[6], 7, vT[4])
                if c == 0: p.valu('v_add_u32', d, vT[5], vT[6])
                else:
                    p.valu('v_xor_b32', d, 64, vT[5])
                    p.valu('v_add_u32', d, d, vT[6])
            p.valu('v_add_u32', vTr[3 * k + 1], 2 * SLOT, d)
            p.valu('v_add_u32', vTr[3 * k + 2], 4 * SLOT, d)

    def tr(self, dst, k, n, off):
        slot = n % NSLOT
        self.p.ds_read_tr(dst, vTr[3 * k + slot // 2], (slot % 2) * SLOT + off, rd=[RDY(n)])

    def load_x(self, ks0, ks1):
        for ks in range(ks0, ks1):
            self.p.bload(Xf(ks), vXoff, sX, sXoff, off=32 * ks)

    def nso(self):
        self.so ^= 1
        return sSo[self.so]

    def dma_group(self, n, regs, srd, sbase, goff, swave, loff, dep=True):
        p = self.p
        so = self.nso()
        rd = [FREE(n)] if dep else []
        p.begin_bundle()
        p.salu('s_add_u32', M0, swave, (n % NSLOT) * SLOT + loff, rd=rd)
        if isinstance(goff, int) and goff == 0:
            so = sbase
            p.raw('s_nop 0')
        else:
            p.salu('s_add_u32', so, sbase, goff)
        p.dma(regs[0], srd, so, 0, args.waux, tag=('st', n))
        p.end_bundle(cls=1)
        for t in range(1, len(regs)):
            p.dma(regs[t], srd, so, 1024 * t, args.waux, tag=('st', n))

    def dma_full(self, n, regs, srd, sbase, st, pitch):
        for h in range(2):
            self.dma_group(n, regs, srd, sbase, (192 * st + 24 * h) * pitch, sL6k, 3072 * h)

    def stamp(self, name, rd=(), inb=False):
        if not args.stamp: return
        p = self.p
        if not inb: p.begin_bundle()
        k = len(self.stamps)
        if k > 0:
            p.raw(f"v_writelane_b32 v0, s100, {k - 1 + 4}", 'valu', rd=[('STAMP', 0)] + list(rd), wr=[('STAMP', 0)])
        p.raw(("s_memtime" if args.stamp == 1 else "s_memrealtime") + " s[100:101]", 'smem', rd=[('STAMP', 0)] + list(rd), wr=[('STAMP', 0)])
        self.stamps.append(name)
        if not inb: p.end_bundle(cls=1)

    def bar(self, n, pin=True):
        rd = [PIN(n)] if pin else []
        if args.stamp: self.p.begin_bundle()
        self.p.barrier(wait_tags=[('st', n)], rd=rd, wr=[RDY(n), FREE(n + 4)])
        if args.stamp:
            self.stamp(f'B{n}', inb=True)
            self.p.end_bundle(cls=1)

    def wfrag(self):
        w = Wf(self.wf); self.wf += 1
        return w

    def stage_mfmas(self, n, items, pin_at=6):
        p = self.p
        L = len(items)
        for k, (acc, first, tt, offA, offB, other, swap) in enumerate(items):
            if offB is None:
                w = KCF[tt - 2]
                self.tr(w.sub(0, 2), tt, n, offA)
            else:
                w = self.wfrag()
                self.tr(w.sub(0, 2), tt, n, offA)
                self.tr(w.sub(2, 2), tt, n, offB)
            wr = [TOK_WS]
            if k == max(0, L - pin_at): wr.append(PIN(n + 1))
            c = 0 if first else acc
            if swap: p.mfma(acc, other, w, c, wr=wr)
            else: p.mfma(acc, w, other, c, wr=wr)

    def unit_stage_items(self, st, acc0, acc1, swap=False):
        it = []
        for kk in range(12):
            ks = 12 * st + kk
            for c, acc in ((0, acc0), (1, acc1)):
                it.append((acc, ks == 0, c, kk * 2048, kk * 2048 + 512, Xf(ks), swap))
        return it

    def qkv_epilogue(self, accs, vst, sst, ssc):
        p = self.p
        for c, acc in enumerate(accs):
            T = PP[c]
            for r in range(16):
                p.valu('v_mul_f32', acc[r], ssc, acc[r])
            for k in range(8):
                p.valu('v_cvt_pk_bf16_f32', T[k], acc[2 * k], acc[2 * k + 1])
            for g in range(2):
                for d in range(2):
                    x, y = T[4 * g + d], T[4 * g + 2 + d]
                    p.raw(f"v_permlane32_swap_b32 {x}, {y}", 'valu', rd=x.regs() + y.regs(), wr=x.regs() + y.regs(), flags=['perm'])
                p.bstore(T.sub(4 * g, 4), vst, sWS, sst[2 * c + g], tag='qkv')

    def silu(self, acc, hks):
        p = self.p
        for r in range(16):
            t = TMP[r % 12]
            p.valu('v_mul_f32', t, sNL2E, acc[r])
            p.trans('v_exp_f32', t, t)
            p.valu('v_fma_f32', t, t, vIC, vIC)
            p.trans('v_rcp_f32', t, t)
            p.valu('v_mul_f32', acc[r], acc[r], t)
            if r % 2 == 1:
                p.valu('v_cvt_pk_bf16_f32', v(HB + 4 * hks + r // 2), acc[r - 1], acc[r])

    def finish(self):
        p = self.p
        p.schedule()
        if args.stamp:
            self.stamp('end'); p.schedule()
            k = len(self.stamps)
            p.text(f"""
    s_waitcnt vmcnt(0) lgkmcnt(0)
    v_writelane_b32 v0, s100, {k - 1 + 4}
    {"s_memtime" if args.stamp == 1 else "s_memrealtime"} s[100:101]
    s_memrealtime s[98:99]
    s_waitcnt lgkmcnt(0)
    v_writelane_b32 v0, s100, {k + 4}
    v_writelane_b32 v0, s98, 2
    v_writelane_b32 v0, s99, 3
    s_lshl_b32 s3, s2, 10
    s_lshl_b32 s4, s46, 8
    s_add_u32 s3, s3, s4
    s_add_u32 s3, s3, {STAMP_BASE[self.name]}
    v_lshlrev_b32 v1, 2, v60
    s_nop 4
    buffer_store_dword v0, v1, s[28:31], s3 offen
""")
            self.stamps.append('drained')
            print(self.name, 'STAMPS', ' '.join(self.stamps), file=sys.stderr)
            open(f'stamps_{self.name}.txt', 'w').write(' '.join(self.stamps))
        p.text(f"""
L_{self.name}_end:
    s_endpgm
""")

def qkv_setup(k):
    p = k.p
    p.salu('s_mul_i32', sT[0], sW, 48 * 3456, scc=False)
    p.salu('s_lshl_b32', sT[1], sJ, 7)
    p.salu('s_add_u32', sUB, sT[0], sT[1])
    p.salu('s_add_u32', sUA, sUB, 16 * 128)
    p.salu('s_lshl_b32', sT[0], sJ, 18)
    p.salu('s_lshl_b32', sT[1], sI, 11)
    p.salu('s_add_u32', sStB[0], sT[0], sT[1])
    for q in range(1, 4):
        p.salu('s_add_u32', sStB[q], sStB[0], q * 65536)
    p.scmp('s_cmp_lt_u32', sJ, 9)
    p.smov(sT[2], f32(QSCALE))
    p.salu('s_cselect_b32', sScB, sT[2], 1.0, scc=False, rdscc=True)
    p.smov(sScA, 1.0)
    p.valu('v_and_b32', vT[0], 31, vLane)
    p.valu('v_lshl_add_u32', vT[1], sW, 5, vT[0])
    p.valu('v_lshlrev_b32', vT[1], 4, vT[1])
    p.valu('v_lshrrev_b32', vT[2], 5, vLane)
    p.valu('v_lshl_add_u32', vStB, vT[2], 15, vT[1])

def variantA_mm(k, swap):
    p = k.p
    if not swap:
        for q in range(4):
            p.salu('s_add_u32', sStA[q], sStB[q], 16 << 18)
        p.valu('v_mov_b32', vStA, vStB)
    else:
        p.salu('s_mul_i32', sT[0], sI, 16 * V_PITCH, scc=False)
        p.salu('s_lshl_b32', sT[1], sJ, 10)
        p.salu('s_add_u32', sT[0], sT[0], sT[1])
        for c in range(2):
            for g in range(2):
                p.salu('s_add_u32', sStA[2 * c + g], sT[0], V_BASE - 2048 + 2 * g * V_PITCH + 512 * c)
        p.valu('v_lshrrev_b32', vT[2], 5, vLane)
        p.valu('v_lshl_add_u32', vT[2], sW, 2, vT[2])
        p.valu('v_mul_u32_u24', vT[2], V_PITCH, vT[2])
        p.valu('v_and_b32', vT[0], 31, vLane)
        p.valu('v_lshl_add_u32', vStA, vT[0], 4, vT[2])

def gate_variant(k):
    p = k.p
    p.salu('s_sub_u32', sT[0], sJ, 11)
    p.salu('s_min_u32', sT[0], sT[0], 3)
    p.salu('s_lshl_b32', sT[0], sT[0], 5)
    p.salu('s_lshl_b32', sT[1], sW, 3)
    p.salu('s_add_u32', sT[0], sT[0], sT[1])
    p.valu('v_lshrrev_b32', vT[0], 3, vLane)
    p.valu('v_add_u32', vT[0], sT[0], vT[0])
    p.valu('v_and_b32', vT[1], 7, vLane)
    p.valu('v_lshlrev_b32', vT[1], 4, vT[1])
    p.valu('v_mul_u32_u24', vT[2], 1152, vT[0])
    p.valu('v_add_u32', vT[2], vT[2], vT[1])
    XG = v(64, 36); GG = v(100, 36)
    for t in range(9):
        p.bload(XG.sub(4 * t, 4), vT[2], sX, sXoff, off=128 * t)
        p.bload(GG.sub(4 * t, 4), vT[1], sGW, 0, off=128 * t)
    p.valu('v_mov_b32', vStA, 0x7fffff00)
    for q in range(4):
        p.smov(sStA[q], 0)
    one = v(140, 4)
    for q in range(4):
        p.valu('v_mov_b32', one[q], 0x3f803f80)
    p.valu('v_and_b32', vT[3], 15, vLane)
    p.valu('v_mul_u32_u24', vT[3], V_PITCH, vT[3])
    p.salu('s_mul_i32', sT[2], sI, 16 * V_PITCH, scc=False)
    p.salu('s_add_u32', sT[2], sT[2], V_BASE + 576 * 16)
    p.bstore(one, vT[3], sWS, sT[2], tag='qkv')
    acc0, acc1 = v(144), v(145)
    p.valu('v_mov_b32', acc0, 0)
    p.valu('v_mov_b32', acc1, 0)
    for d in range(36):
        b = 148 + 6 * (d % 4)
        xl, xh, gl, gh, pk = v(b), v(b + 1), v(b + 2), v(b + 3), v(b + 4)
        p.valu('v_lshlrev_b32', xl, 16, XG[d])
        p.valu('v_and_b32', xh, 0xffff0000, XG[d])
        p.valu('v_lshlrev_b32', gl, 16, GG[d])
        p.valu('v_and_b32', gh, 0xffff0000, GG[d])
        p.valu('v_mul_f32', xl, xl, gl)
        p.valu('v_mul_f32', xh, xh, gh)
        p.valu('v_cvt_pk_bf16_f32', pk, xl, xh)
        p.valu('v_lshlrev_b32', xl, 16, pk)
        p.valu('v_and_b32', xh, 0xffff0000, pk)
        p.valu('v_add_f32', acc0, acc0, xl)
        p.valu('v_add_f32', acc1, acc1, xh)
    p.valu('v_add_f32', acc0, acc0, acc1)
    p.valu('v_add_f32', acc1, acc0, acc0, extra='quad_perm:[1,0,3,2] row_mask:0xf bank_mask:0xf', flags=['dpp'])
    p.valu('v_add_f32', acc0, acc1, acc1, extra='quad_perm:[2,3,0,1] row_mask:0xf bank_mask:0xf', flags=['dpp'])
    p.valu('v_add_f32', acc1, acc0, acc0, extra='row_half_mirror row_mask:0xf bank_mask:0xf', flags=['dpp'])
    z = acc1; t0 = v(146); o = v(148, 2)
    p.valu('v_cvt_pk_bf16_f32', z, z, z)
    p.valu('v_lshlrev_b32', z, 16, z)
    p.valu('v_mul_f32', t0, sNL2E, z)
    p.trans('v_exp_f32', t0, t0)
    p.valu('v_add_f32', t0, 1.0, t0)
    p.trans('v_rcp_f32', t0, t0)
    p.valu('v_cvt_pk_bf16_f32', t0, t0, t0)
    p.valu('v_lshlrev_b32', o[1], 16, t0)
    p.valu('v_sub_f32', t0, 1.0, o[1])
    p.valu('v_cvt_pk_bf16_f32', t0, t0, t0)
    p.valu('v_lshlrev_b32', t0, 16, t0)
    p.trans('v_rcp_f32', t0, t0)
    p.valu('v_min_f32', o[0], f32(2.0 ** 100), t0)
    p.valu('v_lshlrev_b32', vT[4], 3, vT[0])
    p.salu('s_lshl_b32', sT[3], sI, 10)
    p.salu('s_add_u32', sT[3], sT[3], G_BASE)
    p.bstore(o, vT[4], sWS, sT[3], tag='gate')

def g1_setup(k):
    p = k.p
    p.salu('s_mul_i32', sT[0], sJ, 576, scc=False)
    p.salu('s_and_b32', sT[1], sJ, 1)
    p.salu('s_cselect_b32', sT[2], 64, 0, scc=False, rdscc=True)
    p.salu('s_cselect_b32', sT[3], 0, 512, scc=False, rdscc=True)
    p.salu('s_add_u32', sT[2], sT[2], sT[0])
    p.salu('s_add_u32', sT[3], sT[3], sT[0])
    p.salu('s_mul_i32', sT[4], sW, 48 * 9216, scc=False)
    for q in range(4):
        p.salu('s_add_u32', sT[5], sI, q) if args.rot else p.smov(sT[5], q)
        p.salu('s_and_b32', sT[5], sT[5], 3)
        p.salu('s_lshl_b32', sT[5], sT[5], 7)
        p.salu('s_add_u32', sT[5], sT[5], sT[2])
        p.salu('s_add_u32', sU1[q], sT[5], sT[4])
    p.salu('s_mul_i32', sT[4], sW, 80 * 9216, scc=False)
    p.salu('s_add_u32', sUhA, sT[4], sT[3])
    p.salu('s_mul_i32', sT[4], sW, 64 * 9216, scc=False)
    p.salu('s_add_u32', sUhB, sT[4], sT[3])
    k.addr_dma_full(vD1, 9216)
    p.valu('v_lshrrev_b32', vT[2], 2, vLane)
    p.valu('v_mul_u32_u24', vT[2], 9216, vT[2])
    p.valu('v_and_b32', vT[3], 3, vLane)
    p.valu('v_lshl_add_u32', vDh[0], vT[3], 4, vT[2])
    for t in range(1, 4):
        p.valu('v_add_u32', vDh[t], 16 * t * 9216 - 1024 * t, vDh[0])

def g2_setup(k):
    p = k.p
    lanep = v(63)
    p.valu('v_lshrrev_b32', vT[2], 3, vLane)
    p.valu('v_mul_u32_u24', vT[2], 1152, vT[2])
    p.valu('v_lshrrev_b32', vT[3], 2, vLane)
    p.valu('v_and_b32', vT[3], 4, vT[3])
    p.valu('v_and_b32', vT[4], 7, vLane)
    p.valu('v_xor_b32', vT[3], vT[3], vT[4])
    p.valu('v_lshl_add_u32', lanep, vT[3], 4, vT[2])
    p.salu('s_mul_i32', sT[0], sJ, 288, scc=False)
    p.salu('s_and_b32', sT[1], sJ, 1)
    p.salu('s_cselect_b32', sT[2], 32, 0, scc=False, rdscc=True)
    p.salu('s_cselect_b32', sT[3], 0, 256, scc=False, rdscc=True)
    p.salu('s_add_u32', sT[2], sT[2], sT[0])
    p.salu('s_add_u32', sT[3], sT[3], sT[0])
    for idx in range(9):
        if idx < 5:
            mul, add, t = 40, 8 * idx, idx % 4
        else:
            mul, add, t = 32, 160 + 8 * (idx - 5), idx - 5
        p.salu('s_mul_i32', sT[4], sW, mul, scc=False)
        p.salu('s_add_u32', sT[4], sT[4], add)
        p.salu('s_sub_u32', sT[5], sT[4], 32)
        p.salu('s_lshr_b32', sT[6], sT[5], 6)
        if args.rot: p.salu('s_add_u32', sT[6], sT[6], sI)
        p.salu('s_and_b32', sT[6], sT[6], 3)
        p.salu('s_lshl_b32', sT[6], sT[6], 6)
        p.salu('s_and_b32', sT[5], sT[5], 63)
        p.salu('s_add_u32', sT[5], sT[5], sT[6])
        p.salu('s_add_u32', sT[5], sT[5], sT[2])
        p.salu('s_add_u32', sT[6], sT[4], sT[3])
        p.scmp('s_cmp_lt_u32', sT[4], 32)
        p.salu('s_cselect_b32', sT[5], sT[6], sT[5], scc=False, rdscc=True)
        p.salu('s_mul_i32', sT[5], sT[5], 1152, scc=False)
        p.salu('s_add_u32', sT[5], sT[5], 4096 - 1024 * t)
        p.valu('v_add_u32', vD2[idx], sT[5], lanep)
    p.salu('s_mul_i32', sT[0], sJ, 36, scc=False)
    p.salu('s_lshl_b32', sT[1], sW, 3)
    p.salu('s_and_b32', sT[4], sW, 2)
    p.salu('s_add_u32', sT[1], sT[1], sT[4])
    p.salu('s_add_u32', sT[1], sT[1], sT[0])
    p.salu('s_mul_i32', sT[1], sT[1], 1152, scc=False)
    p.valu('v_add_u32', vDo[0], sT[1], lanep)
    p.salu('s_and_b32', sT[1], sW, 1)
    p.salu('s_lshr_b32', sT[4], sW, 1)
    p.salu('s_mul_i32', sT[5], sT[4], 18, scc=False)
    p.salu('s_add_u32', sT[1], sT[1], sT[5])
    p.salu('s_add_u32', sT[1], sT[1], sT[0])
    p.salu('s_add_u32', sT[1], sT[1], 16)
    p.salu('s_mul_i32', sT[1], sT[1], 1152, scc=False)
    p.salu('s_lshl_b32', sT[4], sT[4], 2)
    p.valu('v_and_b32', vT[4], 7, vLane)
    p.valu('v_xor_b32', vT[4], sT[4], vT[4])
    p.valu('v_lshlrev_b32', vT[4], 4, vT[4])
    p.valu('v_add_u32', vDo[1], sT[1], vT[4])
    p.valu('v_lshlrev_b32', vT[4], 4, vLane)
    p.valu('v_lshl_add_u32', vPst, sW, 11, vT[4])
    p.salu('s_sub_u32', sW2[0], sW2[0], 4096)
    p.salu('s_subb_u32', sW2[1], sW2[1], 0, rdscc=True)
    p.smov(sW2[2], 4608 * 1152 + 4096)
    if args.rot:
        p.salu('s_mul_i32', sT[0], sI, 57, scc=False)
        p.scmp('s_cmp_ge_u32', sI, 9)
        p.salu('s_cselect_b32', sT[0], 9, 0, scc=False, rdscc=True)
        p.salu('s_sub_u32', sT[0], sI, sT[0])
    else:
        p.smov(sT[0], 0)
    p.salu('s_lshl_b32', sDp, sT[0], 7)
    p.salu('s_lshl_b32', sDq, sT[0], 14)
    for c in range(2):
        for q in range(4):
            p.valu('v_accvgpr_write_b32', KCF[c][q], 0)

ST_G1 = 6
ST_G2 = 20
NST = 38

def dma_stage(k, n):
    p = k.p
    if n >= NST: return
    if n < 3: k.dma_full(n, vDq, sWq, sUA, n, 3456)
    elif n < 6: k.dma_full(n, vDq, sWq, sUB, n - 3, 3456)
    elif n == 6:
        k.dma_group(n, vDh, sW1, sUhA, 0, sL5k, 0)
        k.dma_group(n, vDh[:1], sW1, sUhA, 64 * 9216, sL5k, 4096)
    elif n == 7:
        k.dma_group(n, vDh, sW1, sUhB, 320 * 9216, sL4k, 0)
    elif n < ST_G2:
        q, st = divmod(n - 8, 3)
        k.dma_full(n, vD1, sW1, sU1[q], st, 9216)
    else:
        dp, hb = divmod(n - ST_G2, 2)
        if hb == 0:
            k.dma_group(n, vD2[0:4], sW2, sDp, 0, sL5k, 0)
            k.dma_group(n, vD2[4:5], sW2, sDp, 0, sL5k, 4096)
        else:
            k.dma_group(n, vD2[5:9], sW2, sDp, 0, sL4k, 0)
            k.dma_group(n, vDo[0:1], sWo, sDp, 0, sL1k, 128 * 128)
            p.begin_bundle()
            p.salu('s_add_u32', M0, sL128, (n % NSLOT) * SLOT + 160 * 128, rd=[FREE(n)])
            p.smov(EXEC, 0xff)
            p.dma(vDo[1], sWo, sDp, 0, args.waux, tag=('st', n))
            p.smov(EXEC, -1)
            p.salu('s_add_u32', sDp, sDp, 128)
            p.scmp('s_cmp_ge_u32', sDp, 1152)
            p.salu('s_cselect_b32', sDp, 0, sDp, scc=False, rdscc=True)
            p.end_bundle(cls=1)

def g1_phase(k):
    p = k.p
    k.bar(6, pin=k.pin_first); dma_stage(k, 10)
    it = [(ACC[1], ks == 0, 2, ks * 1024, ks * 1024 + 256, Xf(ks), False) for ks in range(20)]
    k.stage_mfmas(6, it)
    k.bar(7); dma_stage(k, 11)
    it = [(ACC[1], False, 2, (ks - 20) * 1024, (ks - 20) * 1024 + 256, Xf(ks), False) for ks in range(20, 36)]
    k.stage_mfmas(7, it)
    k.silu(ACC[1], 0)
    for q in range(4):
        a0, a1 = (ACC[2], ACC[3]) if q % 2 == 0 else (ACC[0], ACC[1])
        for st in range(3):
            n = 8 + 3 * q + st
            k.bar(n); dma_stage(k, n + 4)
            k.stage_mfmas(n, k.unit_stage_items(st, a0, a1))
        k.silu(a0, 2 + 4 * q)
        k.silu(a1, 4 + 4 * q)

def attn_phase(k):
    p = k.p
    k.stamp('g1done', rd=[('v', HB + 71)])
    p.salu('s_lshl_b32', sQB, sI, 2)
    p.salu('s_add_u32', sQB, sQB, sW)
    p.salu('s_mul_i32', sT[0], sJ, 9, scc=False)
    p.salu('s_lshr_b32', sT[0], sT[0], 1)
    p.salu('s_lshl_b32', sT[0], sT[0], 15)
    p.salu('s_add_u32', sKo[0], sT[0], 72 * 32768)
    p.salu('s_add_u32', sKo[1], sT[0], 74 * 32768)
    p.salu('s_add_u32', sKo[2], sT[0], 75 * 32768)
    p.smov(sLo, 0xffffffff, )
    p.raw(f"s_mov_b32 s{sLo.b + 1}, 0", 'salu', wr=[('s', sLo.b + 1)])
    p.raw(f"s_mov_b32 s{sHi.b}, 0", 'salu', wr=[('s', sHi.b)])
    p.raw(f"s_mov_b32 s{sHi.b + 1}, -1", 'salu', wr=[('s', sHi.b + 1)])
    hh = vT[0]; tq = vT[1]
    p.valu('v_lshrrev_b32', hh, 5, vLane)
    p.valu('v_and_b32', tq, 31, vLane)
    p.valu('v_lshlrev_b32', vT[2], 3, hh)
    p.valu('v_sub_u32', vQrel, tq, vT[2])
    p.valu('v_lshl_add_u32', vT[2], sQB, 5, tq)
    p.valu('v_lshlrev_b32', vT[2], 4, vT[2])
    p.valu('v_lshl_add_u32', vT[3], hh, 15, vT[2])
    p.salu('s_add_u32', sT[1], sT[0], 2 * 32768)
    p.salu('s_add_u32', sT[2], sT[0], 3 * 32768)
    QA, QC, QB = PP[0].sub(0, 4), PP[0].sub(4, 4), PP[1].sub(0, 4)
    p.bload(QA, vT[3], sWS, sT[0], rd=[('QKVOK', 0)])
    p.bload(QC, vT[2], sWS, sT[1], rd=[('QKVOK', 0)])
    p.bload(QB, vT[3], sWS, sT[2], rd=[('QKVOK', 0)])
    p.valu('v_and_b32', vT[4], 0x13, vLane)
    p.valu('v_bfe_u32', vT[5], vLane, 2, 1)
    p.valu('v_lshl_add_u32', vT[4], vT[5], 3, vT[4])
    p.valu('v_bfe_u32', vT[5], vLane, 3, 1)
    p.valu('v_lshl_add_u32', vT[4], vT[5], 2, vT[4])
    p.valu('v_lshl_add_u32', vT[4], sQB, 5, vT[4])
    p.valu('v_lshlrev_b32', vT[4], 4, vT[4])
    p.valu('v_lshlrev_b32', vT[5], 15, hh)
    for b in range(9):
        p.valu('v_add_u32', vKC[b], (b - 8) * 512, vT[4])
        p.valu('v_max_i32', vKC[b], 0, vKC[b])
        p.valu('v_add_u32', vK[b], vKC[b], vT[5])
    for b in range(9):
        p.bload(Kf(b, 0), vK[b], sWS, sKo[0], rd=[('QKVOK', 0)])
        p.bload(Kf(b, 1), vKC[b], sWS, sKo[1], rd=[('QKVOK', 0)])
        p.bload(Kf(b, 2), vK[b], sWS, sKo[2], rd=[('QKVOK', 0)])
    p.salu('s_mul_i32', sT[3], sJ, 36, scc=False)
    p.valu('v_mul_u32_u24', vT[5], V_PITCH, hh)
    p.valu('v_cmp_gt_u32', VCC, 18, tq)
    for h in range(2):
        p.valu('v_add_u32', vT[6], sT[3], tq)
        if h: p.valu('v_add_u32', vT[6], 18, vT[6])
        p.valu('v_mov_b32', vVa[h], 576)
        p.valu('v_cndmask_b32', vT[6], vVa[h], vT[6], VCC)
        p.valu('v_lshl_add_u32', vVa[h], vT[6], 4, vT[5])
    def vload(h, b):
        p.begin_bundle()
        p.salu('s_add_i32', sVo, sQB, b - 8)
        p.scmp('s_cmp_lt_i32', sVo, 0)
        p.salu('s_mul_i32', sVo, sVo, 4 * V_PITCH, scc=False)
        p.salu('s_cselect_b32', sVo, 0x40000000, sVo, scc=False, rdscc=True)
        p.salu('s_add_u32', sVo, sVo, V_BASE)
        p.bload(Vf(b, 0), vVa[h], sWS, sVo, rd=[('QKVOK', 0)])
        p.salu('s_add_u32', sVo, sVo, 2 * V_PITCH)
        p.bload(Vf(b, 1), vVa[h], sWS, sVo, rd=[('QKVOK', 0)])
        p.end_bundle(cls=1)
    for b in range(9):
        vload(0, b)
    ALL, LO, HI, NONE = 3, 1, 2, 0
    tab = {0: ([ALL] * 4, [HI, HI, ALL, ALL], QA),
           1: ([LO, NONE, NONE, NONE], [LO, LO, LO, NONE], QC),
           2: ([ALL, ALL, LO, LO], [ALL] * 4, QB),
           3: ([NONE, LO, LO, LO], [NONE, NONE, NONE, LO], QC)}
    mk = {ALL: -1, LO: sLo, HI: sHi, NONE: 0}
    for f in range(4):
        ev, od, src = tab[f]
        for d in range(4):
            if ev[d] == ALL and od[d] == ALL:
                p.valu('v_accvgpr_write_b32', QF[f][d], src[d])
            elif ev[d] == NONE and od[d] == NONE:
                p.valu('v_accvgpr_write_b32', QF[f][d], 0)
            else:
                p.begin_bundle()
                p.salu('s_and_b32', sT[4], sJ, 1)
                p.salu('s_cselect_b64', sM2, mk[od[d]], mk[ev[d]], scc=False, rdscc=True)
                p.valu('v_cndmask_b32', TMP[0], 0, src[d], sM2)
                p.end_bundle()
                p.valu('v_accvgpr_write_b32', QF[f][d], TMP[0])
    CD = ACC[3]; NM = ACC[2]; SB = [ACC[0], ACC[1]]
    p.valu('v_mov_b32', vBIG, f32(BIG))
    def cinit(val):
        for r in range(16):
            kr = 16 * (r >> 3) + (r & 7)
            p.begin_bundle()
            p.valu('v_cmp_le_i32', VCC, kr, vQrel)
            p.raw('s_nop 1')
            p.valu('v_cndmask_b32', CD[r], vBIG, val, VCC)
            p.valu('v_cndmask_b32', CO[r], val, vBIG, VCC)
            p.end_bundle()
    zero = TMP[1]
    p.valu('v_mov_b32', zero, 0)
    cinit(zero)
    cnt = 0
    for h in range(2):
        p.valu('v_mov_b32', vMx[h], f32(BIG))
        for b in range(9):
            sb = SB[cnt % 2]; cnt += 1
            c = CO if b == 0 else (CD if b == 8 else 0)
            p.mfma(sb, Kf(b, 2 * h), QF[2 * h], c)
            p.mfma(sb, Kf(b, 1), QF[2 * h + 1], sb)
            for r in range(8):
                p.valu('v_max3_f32', vMx[h], vMx[h], sb[2 * r], sb[2 * r + 1])
        t = TMP[2 + h]
        p.valu('v_mov_b32', t, vMx[h])
        p.raw(f"v_permlane32_swap_b32 {t}, {vMx[h]}", 'valu', rd=t.regs() + vMx[h].regs(), wr=t.regs() + vMx[h].regs(), flags=['perm'])
        p.valu('v_max_f32', vMx[h], vMx[h], t)
        p.valu('v_sub_f32', vMx[h], 0, vMx[h])
    k.stamp('p1done', rd=vMx[1].regs())
    for h in range(2):
        cinit(vMx[h])
        for r in range(16):
            p.valu('v_mov_b32', NM[r], vMx[h])
        for b in range(9):
            sb = SB[cnt % 2]; pp = PP[cnt % 2]; cnt += 1
            c = CO if b == 0 else (CD if b == 8 else NM)
            p.mfma(sb, Kf(b, 2 * h), QF[2 * h], c)
            p.mfma(sb, Kf(b, 1), QF[2 * h + 1], sb)
            for r in range(16):
                p.trans('v_exp_f32', sb[r], sb[r])
                if r % 2 == 1:
                    p.valu('v_cvt_pk_bf16_f32', pp[r // 2], sb[r - 1], sb[r])
            p.mfma(OACC, Vf(b, 0), pp.sub(0, 4), 0 if b == 0 else OACC)
            p.mfma(OACC, Vf(b, 1), pp.sub(4, 4), OACC)
            if h == 0:
                vload(1, b)
        for r in range(11):
            p.valu('v_accvgpr_read_b32', TMP[r], OACC[r])
        p.trans('v_rcp_f32', TMP[10], TMP[10])
        p.valu('v_mul_f32', TMP[10], TMP[10], vG)
        for r in range(10):
            p.valu('v_mul_f32', TMP[r], TMP[r], TMP[10])
        for d in range(4):
            p.valu('v_cvt_pk_bf16_f32', OF[h][d], TMP[2 * d], TMP[2 * d + 1])
        p.valu('v_cvt_pk_bf16_f32', TMP[8], TMP[8], TMP[9])
        p.valu('v_cndmask_b32', OF[2][h], 0, TMP[8], sLo)
        k.stamp(f'p2h{h}', rd=OF[2][h].regs())
    p.valu('v_mov_b32', OF[2][2], 0)
    p.valu('v_mov_b32', OF[2][3], 0)

def g2_phase(k):
    p = k.p
    for dp in range(9):
        a0, a1 = (ACC[0], ACC[1]) if dp % 2 == 0 else (ACC[2], ACC[3])
        n = ST_G2 + 2 * dp
        k.bar(n); dma_stage(k, n + 4)
        it = []
        for u in range(10):
            for c, acc in ((0, a0), (1, a1)):
                it.append((acc, u == 0, c, u * 2048, u * 2048 + 1024, Hk(u), False))
        k.stage_mfmas(n, it)
        k.bar(n + 1); dma_stage(k, n + 5)
        it = []
        for u in range(10):
            other = Hk(10 + u) if u < 8 else OF[u - 8]
            for c, acc in ((0, a0), (1, a1)):
                it.append((acc, False, c, u * 2048, u * 2048 + 1024, other, False))
        for c, acc in ((0, a0), (1, a1)):
            it.append((acc, False, 2 + c, 160 * 128, None, OF[2], False))
        k.stage_mfmas(n + 1, it)
        for c, acc in ((0, a0), (1, a1)):
            T = PP[c]
            for q in range(8):
                p.valu('v_cvt_pk_bf16_f32', T[q], acc[2 * q], acc[2 * q + 1])
            so = sPs
            p.begin_bundle()
            p.salu('s_add_u32', so, sDq, c * 8192)
            p.bstore(T.sub(0, 4), vPst, sP, so, 0, args.paux)
            p.end_bundle()
            p.bstore(T.sub(4, 4), vPst, sP, so, 1024, args.paux)
        p.begin_bundle()
        p.salu('s_add_u32', sDq, sDq, 16384)
        p.scmp('s_cmp_ge_u32', sDq, 9 * 16384)
        p.salu('s_cselect_b32', sDq, 0, sDq, scc=False, rdscc=True)
        p.end_bundle()

def build_k1():
    k = K('qkv_kernel'); p = k.p
    k.prologue()
    k.addr_x(); k.addr_dma_full(vDq, 3456); qkv_setup(k)
    k.addr_tr([(0, 'g1', 0), (1, 'g1', 1)])
    p.schedule(reorder=False)
    global NST
    NST_save = NST; NST = 6
    p.text(f"""
    s_cmp_ge_u32 s45, 11
    s_cbranch_scc1 L_k1_gate
    s_cmp_ge_u32 s45, 2
    s_cbranch_scc1 L_k1_v
""")
    base = p.tr.clone(); t0 = p.model_time
    ends = []
    for var in ('qk', 'v', 'gate'):
        p.tr = base.clone(); p.model_time = t0; k.wf = 0
        if var == 'v': p.label('L_k1_v')
        if var == 'gate': p.label('L_k1_gate')
        if var != 'gate':
            for st in range(3):
                dma_stage(k, st); k.load_x(12 * st, 12 * st + 12)
            dma_stage(k, 3)
            p.schedule(reorder=False)
            variantA_mm(k, var == 'v')
            for st in range(3):
                k.bar(st, pin=st > 0); dma_stage(k, st + 4)
                k.stage_mfmas(st, k.unit_stage_items(st, ACC[0], ACC[1], swap=(var == 'v')))
        else:
            for st in range(3):
                dma_stage(k, 3 + st); k.load_x(12 * st, 12 * st + 12)
            dma_stage(k, 6)
            p.schedule(reorder=False)
            gate_variant(k)
        p.fence_hazards()
        if var != 'gate':
            p.text("    s_branch L_k1_join")
        ends.append(p.tr)
    p.label('L_k1_join')
    p.tr = merge_trackers(ends); k.wf = 0
    k.qkv_epilogue([ACC[0], ACC[1]], vStA, sStA, sScA)
    for st in range(3):
        k.bar(3 + st, pin=st > 0); dma_stage(k, 7 + st)
        k.stage_mfmas(3 + st, k.unit_stage_items(st, ACC[2], ACC[3]))
    k.qkv_epilogue([ACC[2], ACC[3]], vStB, sStB, sScB)
    k.finish()
    NST = NST_save
    return k

def build_k2():
    k = K('main_kernel'); p = k.p
    k.prologue()
    k.addr_x(); g1_setup(k)
    p.schedule(reorder=False)
    dma_stage(k, 6); k.load_x(0, 20)
    dma_stage(k, 7); k.load_x(20, 36)
    dma_stage(k, 8); dma_stage(k, 9)
    p.valu('v_and_b32', vT[0], 31, vLane)
    p.valu('v_lshl_add_u32', vT[0], sW, 5, vT[0])
    p.valu('v_lshlrev_b32', vT[0], 3, vT[0])
    p.salu('s_lshl_b32', sT[3], sI, 10)
    p.salu('s_add_u32', sT[3], sT[3], G_BASE)
    p.bload(v(44, 2), vT[0], sWS, sT[3])
    k.addr_tr([(0, 'g1', 0), (1, 'g1', 1), (2, 'half', 0)])
    p.schedule(reorder=False)
    k.pin_first = False
    g2_setup(k)
    g1_phase(k)
    k.addr_tr([(0, 'g2', 0), (1, 'g2', 1), (2, 'kc', 0), (3, 'kc', 1)])
    attn_phase(k)
    g2_phase(k)
    k.finish()
    return k

def build_k3():
    mi = args.mi; jx = 32 // mi; ngj = 16 // jx
    lg = lambda x: x.bit_length() - 1
    L = []
    L.append(f"""
.globl red_kernel
.p2align 8
.type red_kernel,@function
red_kernel:
    s_cmp_ge_u32 s2, 576
    s_cbranch_scc1 L_red_end
    s_load_dwordx2 s[4:5], s[0:1], 56
    s_load_dwordx2 s[6:7], s[0:1], 72
    s_and_b32 s3, s2, 7
    s_lshr_b32 s20, s2, 3
    s_and_b32 s21, s3, {ngj - 1}
    s_lshr_b32 s22, s3, {lg(ngj)}
    s_lshl_b32 s20, s20, {lg(ngj)}
    s_add_u32 s20, s20, s21
    s_mul_i32 s23, s20, 1821
    s_lshr_b32 s23, s23, 16
    s_mul_i32 s24, s23, 36
    s_sub_u32 s24, s20, s24
    s_lshl_b32 s22, s22, {lg(mi)}
    s_add_u32 s22, s22, s23
    s_mul_i32 s25, s22, {16 * P_WG}
    s_lshl_b32 s26, s24, 12
    s_add_u32 s25, s25, s26
    s_add_u32 s25, s25, {P_BASE}
    v_lshlrev_b32 v1, 4, v0
    s_waitcnt lgkmcnt(0)
    s_add_u32 s8, s6, s25
    s_addc_u32 s9, s7, 0
    s_mov_b32 s10, {16 * P_WG}
    s_mov_b32 s11, 0x00020000
    s_mov_b32 s12, s4
    s_mov_b32 s13, s5
    s_mov_b32 s14, {2048 * 1152}
    s_mov_b32 s15, 0x00020000
""")
    for r in range(16):
        L.append(f"    s_mov_b32 s27, {r * P_WG}")
        L.append(f"    buffer_load_dwordx4 v[{16 + 4 * r}:{19 + 4 * r}], v1, s[8:11], s27 offen")
    L.append(f"""
    v_lshrrev_b32 v2, 6, v0
    v_and_b32 v3, 31, v0
    v_bfe_u32 v4, v0, 5, 1
    s_and_b32 s28, s24, 1
    s_lshr_b32 s29, s24, 1
    v_lshrrev_b32 v5, 1, v2
    v_lshl_add_u32 v5, s28, 1, v5
    v_lshl_add_u32 v3, v5, 5, v3
    v_lshl_add_u32 v3, s22, 7, v3
    v_mul_u32_u24 v3, 1152, v3
    v_and_b32 v2, 1, v2
    v_lshl_add_u32 v3, v2, 5, v3
    v_lshl_add_u32 v3, v4, 4, v3
    s_lshl_b32 s29, s29, 6
""")
    for r in range(16):
        L.append(f"    s_waitcnt vmcnt({15 - r})")
        for d in range(4):
            src = 16 + 4 * r + d
            if r == 0:
                L.append(f"    v_lshlrev_b32 v{8 + 2 * d}, 16, v{src}")
                L.append(f"    v_and_b32 v{9 + 2 * d}, 0xffff0000, v{src}")
            else:
                L.append(f"    v_lshlrev_b32 v6, 16, v{src}")
                L.append(f"    v_and_b32 v7, 0xffff0000, v{src}")
                L.append(f"    v_add_f32 v{8 + 2 * d}, v{8 + 2 * d}, v6")
                L.append(f"    v_add_f32 v{9 + 2 * d}, v{9 + 2 * d}, v7")
    for d in range(4):
        L.append(f"    v_cvt_pk_bf16_f32 v{16 + d}, v{8 + 2 * d}, v{9 + 2 * d}")
    L.append("""    s_nop 1
    v_permlane32_swap_b32 v16, v18
    v_permlane32_swap_b32 v17, v19
    s_nop 1
    buffer_store_dwordx4 v[16:19], v3, s[12:15], s29 offen
L_red_end:
    s_endpgm
""")
    return '\n'.join(L)

def kd(name, nv, acc, ns=102):
    return f""".p2align 6
.amdhsa_kernel {name}
  .amdhsa_next_free_vgpr {nv}
  .amdhsa_next_free_sgpr {ns}
  .amdhsa_accum_offset {acc}
  .amdhsa_group_segment_fixed_size 0
  .amdhsa_kernarg_size 80
  .amdhsa_user_sgpr_count 2
  .amdhsa_user_sgpr_kernarg_segment_ptr 1
  .amdhsa_system_sgpr_workgroup_id_x 1
.end_amdhsa_kernel
"""

k1 = build_k1(); k2 = build_k2(); k3 = build_k3()
hdr = f"""; gated_mix: sliding-window attention + SiLU FFN, generated by work/gen.py
; @launch kernel=qkv_kernel grid=(256,1,1) block=(256,1,1) lds={SLOT * NSLOT}
; @launch kernel=main_kernel grid=(256,1,1) block=(256,1,1) lds={SLOT * NSLOT}
; @launch kernel=red_kernel grid=(576,1,1) block=(256,1,1) lds=0
.amdgcn_target "amdgcn-amd-amdhsa--gfx950"
.text
"""
body = hdr + '\n'.join(k1.p.out) + '\n' + '\n'.join(k2.p.out) + '\n' + k3 + '\n.section .rodata,"a"\n' + kd('qkv_kernel', 512, 256) + kd('main_kernel', 512, 256) + kd('red_kernel', 80, 80, 40)
open(args.out, 'w').write(body)
for k in (k1, k2):
    print(k.name, k.p.stats, 'model cycles', k.p.model_time, file=sys.stderr)
```
